```python
import torch

def _softmax(x, axis=-1):
    return torch.softmax(x, dim=axis)
def _gelu(x):
    return torch.nn.functional.gelu(x, approximate="tanh")
def _silu(x):
    return torch.nn.functional.silu(x)
def _sigmoid(x):
    return torch.sigmoid(x)
def _layernorm(x, axis=-1, eps=1e-5):
    m = x.mean(dim=axis, keepdim=True)
    v = x.var(dim=axis, keepdim=True, unbiased=False)
    return (x - m) / torch.sqrt(v + eps)
def _scatter_add(tgt, idx, src, axis=0):
    return tgt.clone().index_add_(axis, idx, src)
def _segment_sum(src, seg, n):
    out = torch.zeros((n,) + src.shape[1:], dtype=src.dtype)
    return out.index_add_(0, seg, src)
def _pad(x, pw):
    flat = tuple(v for pair in reversed(pw) for v in pair)
    return torch.nn.functional.pad(x, flat)

kernel_name = 'standalone__detection_seg_mask2former__vision'

def setup_inputs():

    _w = (lambda a: (lambda t: t.to(torch.bfloat16) if t.is_floating_point() else t)(torch.as_tensor(a)))
    H = W = 512
    C = 192
    Hc, Wc = H // 2, W // 2
    nh = 4
    Nq = 16
    sc = C ** -0.5
    return {
        "q": _w((lambda *s: torch.randn(*s, dtype=torch.bfloat16) * 0.4)(1, Nq, C)),
        "f_hi": _w((lambda *s: torch.randn(*s, dtype=torch.bfloat16) * 0.4)(1, H, W, C)),
        "f_lo": _w((lambda *s: torch.randn(*s, dtype=torch.bfloat16) * 0.4)(1, Hc, Wc, C)),
        "w_lat": _w((lambda *s: torch.randn(*s, dtype=torch.bfloat16) * 0.4)(C, C) * sc),
        "w_q": _w((lambda *s: torch.randn(*s, dtype=torch.bfloat16) * 3.2)(nh, C, C // nh) * sc),
        "w_k": _w((lambda *s: torch.randn(*s, dtype=torch.bfloat16) * 3.2)(nh, C, C // nh) * sc),
        "w_v": _w((lambda *s: torch.randn(*s, dtype=torch.bfloat16) * 3.2)(nh, C, C // nh) * sc),
        "w_o": _w((lambda *s: torch.randn(*s, dtype=torch.bfloat16) * 3.2)(C, C) * sc),
        "w_m": _w((lambda *s: torch.randn(*s, dtype=torch.bfloat16) * 3.2)(C, C) * sc),
    }

def reference(q, f_hi, f_lo, w_lat, w_q, w_k, w_v, w_o, w_m):
    B, Nq, C = q.shape
    _, H, W, _ = f_hi.shape
    nh = w_q.shape[0]
    dh = C // nh
    up = (lambda x, n, axis: torch.repeat_interleave(x, n, dim=axis))((lambda x, n, axis: torch.repeat_interleave(x, n, dim=axis))(f_lo, 2, axis=1), 2, axis=2)
    feat = f_hi + up @ w_lat
    feat = _layernorm(feat, axis=-1)
    kv = feat.reshape(B, H * W, C)
    m_embed = q @ w_m
    mask_bias = torch.einsum('bqc,bkc->bqk', m_embed, kv) * (C ** -0.5)
    Q = torch.einsum('bqc,hcd->bhqd', q, w_q)
    K = torch.einsum('bkc,hcd->bhkd', kv, w_k)
    V = torch.einsum('bkc,hcd->bhkd', kv, w_v)
    logits = torch.einsum('bhqd,bhkd->bhqk', Q, K) * (dh ** -0.5)
    logits = logits + mask_bias[:, None, :, :]
    attn = _softmax(logits, axis=-1)
    ctx = torch.einsum('bhqk,bhkd->bqhd', attn, V).reshape(B, Nq, C)
    return q + ctx @ w_o
```

```python
import sys
HDR = open('standalone__detection_seg_mask2former__vision.s.ref').read().split('; Override')[0]
def gen(pattern, pol='', rot=1, compute=0, hold=0, nw=72):
    L = []; A = L.append
    unit = 6144
    lds = 163840
    A(HDR + f"; @launch grid=(256,1,1) block=(256,1,1) lds={lds}")
    A('.amdgcn_target "amdgcn-amd-amdhsa--gfx950"\n.text\n.globl standalone__detection_seg_mask2former__vision_kernel\n.p2align 8')
    A('.type standalone__detection_seg_mask2former__vision_kernel,@function\nstandalone__detection_seg_mask2former__vision_kernel:')
    A('  s_cmp_ge_u32 s2, 256\n  s_cbranch_scc1 L_done')
    A('  s_memtime s[60:61]')
    A('  s_load_dwordx16 s[32:47], s[0:1], 0')
    A('  s_load_dwordx8 s[48:55], s[0:1], 64')
    A('  v_lshrrev_b32 v1, 6, v0\n  s_nop 0\n  v_readfirstlane_b32 s20, v1')
    A('  v_and_b32 v0, 63, v0')
    A('  v_lshrrev_b32 v2, 3, v0\n  v_and_b32 v3, 7, v0\n v_xor_b32 v3, v3, v2\n  v_lshlrev_b32 v3, 4, v3')
    A('  v_mul_u32_u24 v4, 768, v2\n  v_add_u32 v10, v4, v3\n  v_add_u32 v11, 6144, v10')
    A('  v_mul_u32_u24 v4, 384, v2\n  v_add_u32 v16, v4, v3\n  v_add_u32 v17, 3072, v16')
    A('  v_lshlrev_b32 v18, 4, v0')
    A('  s_waitcnt lgkmcnt(0)')
    A('  s_mov_b32 s8, s34\n  s_and_b32 s9, s35, 0xffff\n  s_mov_b32 s10, 100663296\n  s_mov_b32 s11, 0x20000')
    A('  s_mov_b32 s12, s36\n  s_and_b32 s13, s37, 0xffff\n  s_mov_b32 s14, 25165824\n  s_mov_b32 s15, 0x20000')
    for d, p in ((64, 38), (68, 40), (72, 42), (76, 48)):
        A(f'  s_mov_b32 s{d}, s{p}\n  s_and_b32 s{d+1}, s{p+1}, 0xffff\n  s_mov_b32 s{d+2}, 73728\n  s_mov_b32 s{d+3}, 0x20000')
    A(f'  s_mul_i32 s21, s2, 393216\n  s_mul_i32 s22, s20, {64*768}\n  s_add_u32 s21, s21, s22')
    A(f'  s_mul_i32 s23, s2, 98304\n  s_mul_i32 s22, s20, {64*384}\n  s_add_u32 s23, s23, s22')
    A(f'  s_mul_i32 s24, s20, 22528\n s_add_u32 s24, s24, 73728')
    A(f'  s_mul_i32 s26, s20, 18432')
    if rot == 1:
        A('  s_lshr_b32 s28, s2, 3\n s_mul_i32 s29, s28, 3641\n s_lshr_b32 s29, s29, 16\n s_mul_i32 s29, s29, 18\n s_sub_u32 s28, s28, s29')
        A('  s_lshl_b32 s28, s28, 10')
    else:
        A('  s_mov_b32 s28, 0')
    units = []
    for mt in range(4):
        units.append(('lo', mt * 6144))
        for t in range(4):
            dy, dx = t >> 1, t & 1
            units.append(('hi', dy * 196608 + mt * 12288 + dx * 384))
    slotmap = [0, 1, 0, 2, 1]
    slot_of = [slotmap[n % 5] for n in range(20)]
    ntf = (' ' + pol) if pol else ''
    def piece(n, J, hf):
        kind, off = units[n]; slot = slot_of[n]
        base = 's21' if kind == 'hi' else 's23'
        A(f'  s_add_u32 s25, {base}, {off}')
        A(f'  s_add_u32 m0, s24, {slot*unit + J*2048 + hf*1024 - J*128}')
        A('  s_nop 0')
        v = (10 if kind == 'hi' else 16) + hf
        srd = 's[8:11]' if kind == 'hi' else 's[12:15]'
        A(f'  buffer_load_dwordx4 v{v}, {srd}, s25 offen offset:{J*128}{ntf} lds')
    def issue(n):
        for J in range(3):
            for hf in range(2): piece(n, J, hf)
    sp = [(n, J, hf) for n in (0, 3, 1) for J in range(3) for hf in range(2)]
    wp = [(srd, j) for srd in (68, 76, 72, 64) for j in range(18)][:nw]
    def wpiece(k):
        srd, j = wp[k]
        A(f'  s_add_u32 s27, s26, s28')
        A(f'  s_mov_b32 m0, s27')
        A(f'  s_add_u32 s28, s28, 1024\n s_cmp_eq_u32 s28, 18432\n s_cselect_b32 s28, 0, s28')
        if srd == 68:
            A(f'  buffer_load_dwordx4 v18, s[{srd}:{srd+3}], s27 offen lds')
        else:
            r0 = {76: 20, 72: 92, 64: 164}[srd]
            A(f'  buffer_load_dwordx4 v[{r0+4*j}:{r0+4*j+3}], v18, s[{srd}:{srd+3}], s27 offen')
    def emit(pat):
        si = wi = 0
        for ch in pat:
            if ch == 's' and si < len(sp): piece(*sp[si]); si += 1
            if ch == 'w' and wi < len(wp): wpiece(wi); wi += 1
        assert si == len(sp) and wi == len(wp), (si, wi)
    if isinstance(pattern, tuple):
        A('  s_lshr_b32 s30, s2, 3\n s_and_b32 s30, s30, 1\n s_cmp_eq_u32 s30, 0\n s_cbranch_scc1 L_alt')
        emit(pattern[0]); A('  s_branch L_join\nL_alt:'); emit(pattern[1]); A('L_join:')
    else:
        emit(pattern)
    ts = 0
    A(f'  s_memtime s[{80+2*ts}:{81+2*ts}]'); ts += 1
    A(f'  s_waitcnt vmcnt(0)')
    A(f'  s_memtime s[{80+2*ts}:{81+2*ts}]'); ts += 1
    for _ in range(compute // 64): A('  s_nop 15')
    issued = [0, 3, 1]
    for n in range(20):
        younger = len(issued) - 1 - issued.index(n)
        A(f'  s_waitcnt vmcnt({younger*6})')
        for _ in range(hold // 64): A('  s_nop 15')
        nxt = [k for k in range(n + 1, 20) if slot_of[k] == slot_of[n]]
        if nxt: issue(nxt[0]); issued.append(nxt[0])
    A(f'  s_memtime s[{80+2*ts}:{81+2*ts}]'); ts += 1
    A('  s_waitcnt lgkmcnt(0)')
    A('  s_mov_b32 s16, s54\n  s_and_b32 s17, s55, 0xffff\n  s_mov_b32 s18, 0x100000\n  s_mov_b32 s19, 0x20000')
    A('  s_lshl_b32 s28, s2, 2\n s_add_u32 s28, s28, s20\n s_lshl_b32 s28, s28, 6')
    A('  v_mov_b32 v5, 0')
    for i in range(ts):
        A(f'  s_sub_u32 s29, s{80+2*i}, s60\n  v_mov_b32 v6, s29\n  buffer_store_dword v6, v5, s[16:19], s28 offen offset:{4*i}')
    A('  s_waitcnt vmcnt(0)')
    A('L_done:\n  s_endpgm')
    A('''.section .rodata,"a"
.p2align 6
.amdhsa_kernel standalone__detection_seg_mask2former__vision_kernel
  .amdhsa_next_free_vgpr 512
  .amdhsa_next_free_sgpr 102
  .amdhsa_accum_offset 256
  .amdhsa_group_segment_fixed_size 0
  .amdhsa_kernarg_size 96
  .amdhsa_user_sgpr_count 2
  .amdhsa_user_sgpr_kernarg_segment_ptr 1
  .amdhsa_system_sgpr_workgroup_id_x 1
.end_amdhsa_kernel''')
    return '\n'.join(L) + '\n'
names = []
pats = {
 'S_W': 's'*18 + 'w'*72,
 'W_S': 'w'*72 + 's'*18,
 'il4': 'swwww'*18,
 'il2': 'sww'*18 + 'w'*36,
 'il3': 'swww'*18 + 'w'*18,
 'par': ('s'*18 + 'w'*72, 'w'*72 + 's'*18),
 'par2': ('s'*18 + 'w'*72, 'w'*36 + 's'*18 + 'w'*36),
}
for pol in ('', 'nt'):
    for nm, p in pats.items():
        f = f"t1/p3_{pol or 'def'}_{nm}.s"
        open('work/' + f, 'w').write(gen(p, pol))
        names.append(f)
    f = f"t1/p3_{pol or 'def'}_w24.s"
    open('work/' + f, 'w').write(gen('sw'*18 + 'w'*6, pol, nw=24)); names.append(f)
print(' '.join(names))
print(', '.join('"work/%s"' % n for n in names))
```
